```python
import torch

def _softmax(x, axis=-1):
    return torch.softmax(x, dim=axis)
def _gelu(x):
    return torch.nn.functional.gelu(x, approximate="tanh")
def _silu(x):
    return torch.nn.functional.silu(x)
def _sigmoid(x):
    return torch.sigmoid(x)
def _layernorm(x, axis=-1, eps=1e-5):
    m = x.mean(dim=axis, keepdim=True)
    v = x.var(dim=axis, keepdim=True, unbiased=False)
    return (x - m) / torch.sqrt(v + eps)
def _scatter_add(tgt, idx, src, axis=0):
    return tgt.clone().index_add_(axis, idx, src)
def _segment_sum(src, seg, n):
    out = torch.zeros((n,) + src.shape[1:], dtype=src.dtype)
    return out.index_add_(0, seg, src)
def _pad(x, pw):
    flat = tuple(v for pair in reversed(pw) for v in pair)
    return torch.nn.functional.pad(x, flat)

kernel_name = 'standalone__mha_softmax__decode'

def setup_inputs():

    _w = (lambda a: (lambda t: t.to(torch.bfloat16) if t.is_floating_point() else t)(torch.as_tensor(a)))
    B, H, Sq, Sk, D = 2, 32, 1, 4096, 128
    return {
        "q": _w((lambda *s: torch.randn(*s, dtype=torch.bfloat16) * 0.8)(B, H, Sq, D)),
        "k": _w((lambda *s: torch.randn(*s, dtype=torch.bfloat16) * 0.8)(B, H, Sk, D)),
        "v": _w((lambda *s: torch.randn(*s, dtype=torch.bfloat16) * 0.05)(B, H, Sk, D)),
    }

def reference(q, k, v):
    scale = q.shape[-1] ** -0.5
    scores = torch.einsum("bhqd,bhkd->bhqk", q, k) * scale
    p = _softmax(scores, axis=-1)
    return torch.einsum("bhqk,bhkd->bhqd", p, v)
```

```python
import math, struct

def f2u(x):
    return struct.unpack('<I', struct.pack('<f', x))[0]

HEADER = """; Kernarg layout for this problem (48 bytes, ptrs only, base s[0:1]):
"""
DOC = """;
"""
DPP = "row_mask:0xf bank_mask:0xf"

def gen(PK=5, PV=7, flags="nt", stamp=0, lds=90112, vg=104, amap=0, force=None, tries=6,
        name="standalone__mha_softmax__decode"):
    TE = PV - PK
    assert 0 <= TE <= 2
    L = []; A = L.append
    A(HEADER.rstrip())
    A(f"; @launch grid=(256,1,1) block=(320,1,1) lds={lds}")
    if stamp: A("; stampwaves=5")
    A(DOC.rstrip())
    A('.amdgcn_target "amdgcn-amd-amdhsa--gfx950"')
    A(".text"); A(f".globl {name}_kernel"); A(".p2align 8"); A(f".type {name}_kernel,@function")
    A(f"{name}_kernel:")
    vX=1; vQO=2; vT=3; vQ=4; vACC=8; vTMP=16; vZ=24; vP=28; vPB=32; vM=34; vL=35; vOF=36; vR=40
    sQ=4; sP=8; sV=12; sO=14; sD=16; sW=18
    sHEAD=20; sJ=21; sC=22; sMASK=23; sPF=24; sIT=25; sWAVE=26; sT=27
    sM1=28; sM2=30; sM3=32; sX=34; sPX=35; sXC=36; sFL=37
    sST=64
    LDS_ML=2048; MSG_OFF=0x20000
    def ST(i):
        if stamp: A(f"    s_memrealtime s[{sST+2*i}:{sST+2*i+1}]")
    nsg = 96 if stamp else 40
    ST(0)
    A(f"    s_load_dwordx2 s[{sP}:{sP+1}], s[0:1], 8          ; k")
    A(f"    s_load_dwordx2 s[{sQ}:{sQ+1}], s[0:1], 0          ; q")
    A(f"    s_load_dwordx8 s[{sV}:{sV+7}], s[0:1], 16")
    A("    s_cmpk_ge_u32 s2, 256")
    A("    s_cbranch_scc1 L_end")
    A(f"    s_and_b32 s{sHEAD}, s2, 63"); A(f"    s_lshr_b32 s{sJ}, s2, 6")
    if amap == 5: A(f"    s_xor_b32 s{sHEAD}, s{sHEAD}, s{sJ}")
    A(f"    v_readfirstlane_b32 s{sWAVE}, v0            ; wave*64")
    A(f"    s_lshl_b32 s3, s{sHEAD}, 2")
    A(f"    s_or_b32 s{sT}, s3, s{sJ}")
    A(f"    v_lshlrev_b32 v{vT}, 4, v0")
    A(f"    v_and_b32 v{vQO}, 0xf0, v{vT}")
    A(f"    s_lshl_b32 s3, s{sHEAD}, 8")
    A(f"    v_or_b32 v{vQO}, s3, v{vQO}")
    A(f"    s_cmpk_eq_u32 s{sWAVE}, 0x100")
    A("    s_cbranch_scc1 L_fw")
    A(f"    s_lshl_b32 s3, s{sT}, 18")
    A(f"    s_add_u32 s{sP+2}, s3, 0x40000")
    A(f"    s_mov_b32 s{sP+3}, 0x20000")
    A(f"    s_lshl_b32 s{sX}, s2, 9")
    A(f"    s_and_b32 s{sFL}, s{sX}, 0x3000")
    A(f"    s_and_b32 s{sX}, s{sX}, 0x4000")
    A(f"    s_or_b32 s3, s3, s{sFL}")
    A(f"    s_lshl_b32 s{sFL}, s{sWAVE}, 6")
    A(f"    s_xor_b32 s3, s3, s{sFL}")
    A(f"    v_or_b32 v{vOF}, s3, v{vT}")
    for b in range(1, 4): A(f"    v_xor_b32 v{vOF+b}, {4096*b}, v{vOF}")
    A(f"    s_mov_b32 s{sPF}, 0")
    A(f"    s_mov_b32 s{sPX}, s{sX}")
    A("    s_waitcnt lgkmcnt(0)")
    ST(1)
    def ld(n):
        r = vR + 4 * (n % 16)
        A(f"    buffer_load_dwordx4 v[{r}:{r+3}], v{vOF + n % 4}, s[{sP}:{sP+3}], s{sPX} offen {flags}".rstrip())
        if n % 4 == 3:
            A(f"    s_add_u32 s{sPF}, s{sPF}, 0x4000")
            A(f"    s_xor_b32 s{sPX}, s{sPF}, s{sX}")
    fill = [f"    s_mov_b32 s{sM1}, 0x22222222", f"    s_mov_b32 s{sM1+1}, 0x22222222",
            f"    s_mov_b32 s{sM2}, 0x44444444", f"    s_mov_b32 s{sM2+1}, 0x44444444",
            f"    s_mov_b32 s{sM3}, 0x88888888", f"    s_mov_b32 s{sM3+1}, 0x88888888",
            f"    s_mov_b32 s{sMASK}, 0xffff0000", f"    s_mov_b32 s{sIT}, 0",
            f"    s_mov_b32 s{sC}, 0x{f2u(128 ** -0.5 * math.log2(math.e)):08x}"]
    fill += [f"    v_mov_b32 v{vACC+i}, 0" for i in range(8)]
    for n in range(PK):
        if n == 1:
            A(f"    global_load_dwordx4 v[{vQ}:{vQ+3}], v{vQO}, s[{sQ}:{sQ+1}]")
            A(fill.pop(0))
        ld(n)
        A(fill.pop(0))
    for f in fill: A(f)
    if stamp:
        for i in range(4, 16): A(f"    s_mov_b32 s{sST+i}, 0")
        A(f"    s_waitcnt vmcnt({PK-1})")
        ST(2)
    A("L_k:")
    x = vTMP
    for u in range(4):
        for b in range(4):
            n = 4 * u + b
            if n + PK == 16:
                A(f"    s_cmp_eq_u32 s{sPF}, 0x40000")
                A(f"    s_cselect_b32 s{sP}, s{sV}, s{sP}")
                A(f"    s_cselect_b32 s{sP+1}, s{sV+1}, s{sP+1}")
                A(f"    s_cselect_b32 s{sPF}, 0, s{sPF}")
                A(f"    s_cselect_b32 s{sPX}, s{sX}, s{sPX}")
            A(f"    s_waitcnt vmcnt({PK-1})")
            ld(n + PK)
            r = vR + 4 * n
            A(f"    v_dot2_f32_bf16 v{x+b}, v{r}, v{vQ}, 0")
            for i in range(1, 4): A(f"    v_dot2_f32_bf16 v{x+b}, v{r+i}, v{vQ+i}, v{x+b}")
        y0, y1, z = vTMP + 4, vTMP + 5, vZ + u
        A(f"    v_add_f32_dpp v{y0}, v{x}, v{x} row_ror:8 row_mask:0xf bank_mask:0x3")
        A(f"    v_add_f32_dpp v{y1}, v{x+1}, v{x+1} row_ror:8 row_mask:0xf bank_mask:0x3")
        A(f"    v_add_f32_dpp v{y0}, v{x+2}, v{x+2} row_ror:8 row_mask:0xf bank_mask:0xc")
        A(f"    v_add_f32_dpp v{y1}, v{x+3}, v{x+3} row_ror:8 row_mask:0xf bank_mask:0xc")
        A("    s_nop 0")
        A(f"    v_add_f32_dpp v{z}, v{y0}, v{y0} row_shl:4 row_mask:0xf bank_mask:0x5")
        A(f"    v_add_f32_dpp v{z}, v{y1}, v{y1} row_shr:4 row_mask:0xf bank_mask:0xa")
        if u == 3:
            A(f"    v_mov_b32 v{vP}, v{vP+1}"); A(f"    v_mov_b32 v{vP+1}, v{vP+2}")
        else:
            A("    s_nop 1")
        A(f"    v_add_f32_dpp v{z}, v{z}, v{z} quad_perm:[1,0,3,2] {DPP}")
        if u == 3:
            A(f"    v_mov_b32 v{vP+2}, v{vP+3}")
            A(f"    v_cndmask_b32 v{vP+3}, v{vZ}, v{vZ+1}, s[{sM1}:{sM1+1}]")
        else:
            A("    s_nop 1")
        A(f"    v_add_f32_dpp v{z}, v{z}, v{z} quad_perm:[2,3,0,1] {DPP}")
    A(f"    v_cndmask_b32 v{vP+3}, v{vP+3}, v{vZ+2}, s[{sM2}:{sM2+1}]")
    A(f"    s_add_u32 s{sIT}, s{sIT}, 1")
    A(f"    s_cmp_lt_u32 s{sIT}, 4")
    A(f"    v_cndmask_b32 v{vP+3}, v{vP+3}, v{vZ+3}, s[{sM3}:{sM3+1}]")
    A("    s_cbranch_scc1 L_k")
    ST(3)
    def extra(k):
        if k < TE:
            A(f"    s_waitcnt vmcnt({PK-1})")
            ld(PK + k)
    A(f"    v_max3_f32 v{vM}, v{vP}, v{vP+1}, v{vP+2}")
    A(f"    v_max_f32 v{vM}, v{vM}, v{vP+3}")
    A(f"    s_lshr_b32 s3, s{sWAVE}, 3")
    A(f"    v_mov_b32 v{vX}, s3")
    for sh in (8, 4, 2, 1):
        A(f"    v_max_f32_dpp v{vM}, v{vM}, v{vM} row_ror:{sh} {DPP}")
        if sh != 1: A("    s_nop 1")
    A(f"    v_mov_b32 v{vT}, v{vM}")
    A("    s_nop 1")
    A(f"    v_permlane32_swap_b32 v{vT}, v{vM}")
    A(f"    v_max_f32 v{vM}, v{vM}, v{vT}")
    A(f"    v_mov_b32 v{vT}, v{vM}")
    A("    s_nop 1")
    A(f"    v_permlane16_swap_b32 v{vT}, v{vM}")
    A(f"    v_max_f32 v{vM}, v{vM}, v{vT}")
    extra(0)
    A(f"    v_mul_f32 v{vM}, s{sC}, v{vM}")
    for i in range(4): A(f"    v_fma_f32 v{vP+i}, v{vP+i}, s{sC}, -v{vM}")
    for i in range(4): A(f"    v_exp_f32 v{vP+i}, v{vP+i}")
    A(f"    v_add_f32 v{vL}, v{vP}, v{vP+1}")
    A(f"    v_add_f32 v{vT}, v{vP+2}, v{vP+3}")
    A(f"    v_add_f32 v{vL}, v{vL}, v{vT}")
    for sh in (8, 4, 2, 1):
        A("    s_nop 1")
        A(f"    v_add_f32_dpp v{vL}, v{vL}, v{vL} row_ror:{sh} {DPP}")
    A(f"    v_mov_b32 v{vT}, v{vL}")
    A("    s_nop 1")
    A(f"    v_permlane32_swap_b32 v{vT}, v{vL}")
    A(f"    v_add_f32 v{vL}, v{vL}, v{vT}")
    A(f"    v_mov_b32 v{vT}, v{vL}")
    A("    s_nop 1")
    A(f"    v_permlane16_swap_b32 v{vT}, v{vL}")
    A(f"    v_add_f32 v{vL}, v{vL}, v{vT}")
    A(f"    ds_write_b64 v{vX}, v[{vM}:{vM+1}] offset:{LDS_ML}")
    A(f"    v_lshlrev_b32 v{vX}, 3, v0")
    A(f"    s_mov_b32 s{sIT}, 0")
    extra(1)
    A("    s_waitcnt lgkmcnt(0)")
    A("    s_barrier")
    A("L_v:")
    for u in range(4):
        for b in range(4):
            n = 4 * u + b
            r = vR + 4 * n
            pb = vPB + (n & 1)
            A(f"    v_mov_b32_dpp v{pb}, v{vP} row_newbcast:{4*b+u} {DPP}")
            if n == 15:
                A(f"    v_mov_b32 v{vP}, v{vP+1}"); A(f"    v_mov_b32 v{vP+1}, v{vP+2}"); A(f"    v_mov_b32 v{vP+2}, v{vP+3}")
                A(f"    s_add_u32 s{sIT}, s{sIT}, 1")
            A(f"    s_waitcnt vmcnt({PV-1})")
            ld(n + PV)
            for i in range(4):
                A(f"    v_lshlrev_b32 v{vTMP+2*i}, 16, v{r+i}")
                A(f"    v_and_b32 v{vTMP+2*i+1}, s{sMASK}, v{r+i}")
            if n == 15: A(f"    s_cmp_lt_u32 s{sIT}, 4")
            sel = "op_sel_hi:[1,0,1]" if (n & 1) == 0 else "op_sel:[0,1,0] op_sel_hi:[1,1,1]"
            for i in range(4):
                A(f"    v_pk_fma_f32 v[{vACC+2*i}:{vACC+2*i+1}], v[{vTMP+2*i}:{vTMP+2*i+1}], v[{vPB}:{vPB+1}], v[{vACC+2*i}:{vACC+2*i+1}] {sel}")
    A("    s_cbranch_scc1 L_v")
    ST(4)
    for i in range(4): A(f"    v_permlane32_swap_b32 v{vACC+i}, v{vACC+4+i}")
    A(f"    v_pk_add_f32 v[{vACC}:{vACC+1}], v[{vACC}:{vACC+1}], v[{vACC+4}:{vACC+5}]")
    A(f"    v_pk_add_f32 v[{vACC+2}:{vACC+3}], v[{vACC+2}:{vACC+3}], v[{vACC+6}:{vACC+7}]")
    A("    s_nop 1")
    A(f"    v_permlane16_swap_b32 v{vACC}, v{vACC+2}")
    A(f"    v_permlane16_swap_b32 v{vACC+1}, v{vACC+3}")
    A(f"    v_pk_add_f32 v[{vACC}:{vACC+1}], v[{vACC}:{vACC+1}], v[{vACC+2}:{vACC+3}]")
    A(f"    ds_write_b64 v{vX}, v[{vACC}:{vACC+1}]")
    A("    s_waitcnt lgkmcnt(0)")
    A("    s_barrier")
    if stamp:
        A(f"    s_getpc_b64 s[{sST+14}:{sST+15}]")
        A("    s_branch L_fin")
    A("L_end:")
    A("    s_endpgm")

    fA=4
    fMA=8
    fOA=9
    fLA=10
    fDA=11
    fE=12
    fME=20
    fMS=24
    fW=28
    fF=32
    fO=36
    fPA=44
    fPB=50
    fC=56
    fT=64; fU=65; fS=66; fMO=68
    A("L_fw:")
    A(f"    v_and_b32 v{fT}, 63, v0")
    A(f"    v_lshlrev_b32 v{fLA}, 3, v{fT}")
    A(f"    s_lshl_b32 s3, s{sT}, 9")
    A(f"    v_or_b32 v{fA+3}, s3, v{fLA}")
    for k in range(3): A(f"    v_xor_b32 v{fA+k}, {(k+1)*512}, v{fA+3}")
    A(f"    s_lshl_b32 s3, s{sHEAD}, 9")
    A(f"    s_add_u32 s3, s3, {MSG_OFF:#x}")
    A(f"    v_and_b32 v{fU}, 3, v0")
    A(f"    v_lshl_add_u32 v{fMA}, v{fU}, 7, s3")
    A(f"    v_lshrrev_b32 v{fT}, 4, v{fT}")
    A(f"    v_lshl_add_u32 v{fOA}, v{fT}, 2, v{vQO}")
    A(f"    s_lshl_b32 s3, s{sHEAD}, 2")
    A(f"    v_mov_b32 v{fDA}, s3")
    A(f"    s_getreg_b32 s{sXC}, hwreg(HW_REG_XCC_ID, 0, 4)")
    A(f"    s_lshl_b32 s{sXC}, s{sXC}, 1")
    A(f"    v_lshlrev_b32 v{fU}, 3, v{fU}")
    if stamp:
        for i in range(4, 16): A(f"    s_mov_b32 s{sST+i}, 0")
    A("    s_waitcnt lgkmcnt(0)")
    ST(1)
    A(f"    global_load_dwordx2 v[{fE+6}:{fE+7}], v{fA+3}, s[{sW}:{sW+1}] sc1")
    A(f"    s_lshl_b64 exec, 1, s{sJ}")
    A(f"    global_load_dword v{fT}, v{fMA}, s[{sW}:{sW+1}] sc1")
    A("    s_mov_b64 exec, -1")
    A("    s_waitcnt vmcnt(0)")
    for k in range(3): A(f"    global_load_dwordx2 v[{fE+2*k}:{fE+2*k+1}], v{fA+k}, s[{sW}:{sW+1}] sc1")
    A("    s_waitcnt vmcnt(0)")
    A(f"    global_load_dwordx3 v[{fME}:{fME+2}], v{fMA}, s[{sW}:{sW+1}] sc1")
    for k in range(8): A(f"    v_bfi_b32 v{fE+k}, v{fE+k}, 0, 1")
    A("    s_waitcnt vmcnt(0)")
    ST(2)
    for k in range(3): A(f"    v_bfi_b32 v{fME+k}, v{fME+k}, 0, 1")
    A(f"    v_or_b32 v{fME}, s{sXC}, v{fME}")
    A("    s_barrier")
    A(f"    ds_read_b64 v[{fMS}:{fMS+1}], v{fU} offset:{LDS_ML}")
    def quad_softmax(t, l, T, e, Lsum):
        A(f"    v_max_f32_dpp v{T}, v{t}, v{t} quad_perm:[1,0,3,2] {DPP}")
        A("    s_nop 1")
        A(f"    v_max_f32_dpp v{T}, v{T}, v{T} quad_perm:[2,3,0,1] {DPP}")
        A(f"    v_sub_f32 v{e}, v{t}, v{T}")
        A(f"    v_exp_f32 v{e}, v{e}")
        A("    s_nop 0")
        A(f"    v_mul_f32 v{Lsum}, v{l}, v{e}")
        A("    s_nop 1")
        A(f"    v_add_f32_dpp v{Lsum}, v{Lsum}, v{Lsum} quad_perm:[1,0,3,2] {DPP}")
        A("    s_nop 1")
        A(f"    v_add_f32_dpp v{Lsum}, v{Lsum}, v{Lsum} quad_perm:[2,3,0,1] {DPP}")
    A("    s_waitcnt lgkmcnt(0)")
    quad_softmax(fMS, fMS + 1, fMO + 1, fT, fMO + 2)
    for w in range(4): A(f"    v_mov_b32_dpp v{fW+w}, v{fT} quad_perm:[{w},{w},{w},{w}] {DPP}")
    A(f"    v_lshl_or_b32 v{fMO}, v{fMO+1}, 31, v{fME}")
    A(f"    v_bfi_b32 v{fMO+1}, 1, v{fME+1}, v{fMO+1}")
    A(f"    v_bfi_b32 v{fMO+2}, 1, v{fME+2}, v{fMO+2}")
    A(f"    s_lshl_b64 exec, 1, s{sJ}")
    A(f"    global_store_dwordx3 v{fMA}, v[{fMO}:{fMO+2}], s[{sW}:{sW+1}]")
    A("    s_mov_b64 exec, -1")
    A(f"    s_mov_b32 s{sIT}, {tries}")
    A("    s_waitcnt vmcnt(0)")
    A("L_msg:")
    A(f"    global_load_dwordx3 v[{fMS}:{fMS+2}], v{fMA}, s[{sW}:{sW+1}] sc1")
    A("    s_waitcnt vmcnt(0)")
    for k in range(3): A(f"    v_xor_b32 v{fC+k}, v{fMS+k}, v{fME+k}")
    A(f"    v_or_b32 v{fT}, v{fC+1}, v{fC+2}")
    A(f"    v_and_or_b32 v{fT}, v{fT}, 1, v{fC}")
    A(f"    v_lshlrev_b32 v{fT}, 1, v{fT}")
    A(f"    v_cmp_ne_u32 vcc, 0, v{fT}")
    if force == "T": A("    s_mov_b64 vcc, 1")
    if force == "mix":
        A("    s_mul_i32 s3, s2, 0x9e3779b1"); A("    s_bitcmp1_b32 s3, 29"); A("    s_cselect_b64 vcc, 1, vcc")
    A("    s_cbranch_vccz L_local")
    A(f"    s_sub_u32 s{sIT}, s{sIT}, 1")
    A(f"    s_cmp_lg_u32 s{sIT}, 0")
    A("    s_cbranch_scc1 L_msg")
    A("    s_branch L_global")
    def factors():
        A(f"    v_lshrrev_b32 v{fMS}, 31, v{fMS}")
        A(f"    v_bfi_b32 v{fMS+1}, 1, v{fMS}, v{fMS+1}")
        A(f"    v_and_b32 v{fMS+2}, -2, v{fMS+2}")
        A("    s_nop 0")
        quad_softmax(fMS + 1, fMS + 2, fU, fT, fS)
        A(f"    v_rcp_f32 v{fS}, v{fS}")
        A("    s_nop 0")
        A(f"    v_mul_f32 v{fT}, v{fT}, v{fS}")
        for k in range(4):
            A(f"    s_xor_b32 s3, s{sJ}, {k}")
            A(f"    v_readlane_b32 s{sFL}, v{fT}, s3")
            A("    s_nop 1")
            A(f"    v_mov_b32 v{fF+k}, s{sFL}")
    def gather():
        for w in range(4): A(f"    ds_read_b64 v[{fO+2*w}:{fO+2*w+1}], v{fLA} offset:{512*w}")
    def combine():
        lo3, hi3 = "op_sel_hi:[1,0,1]", "op_sel:[0,1,0] op_sel_hi:[1,1,1]"
        A("    s_waitcnt lgkmcnt(0)" if stamp else "    s_waitcnt lgkmcnt(2)")
        A(f"    v_pk_mul_f32 v[{fO}:{fO+1}], v[{fO}:{fO+1}], v[{fW}:{fW+1}] op_sel_hi:[1,0]")
        A(f"    v_pk_fma_f32 v[{fO}:{fO+1}], v[{fO+2}:{fO+3}], v[{fW}:{fW+1}], v[{fO}:{fO+1}] {hi3}")
        A("    s_waitcnt lgkmcnt(0)")
        A(f"    v_pk_fma_f32 v[{fO}:{fO+1}], v[{fO+4}:{fO+5}], v[{fW+2}:{fW+3}], v[{fO}:{fO+1}] {lo3}")
        A(f"    v_pk_fma_f32 v[{fO}:{fO+1}], v[{fO+6}:{fO+7}], v[{fW+2}:{fW+3}], v[{fO}:{fO+1}] {hi3}")
        A(f"    v_bfi_b32 v{fO}, 1, v{fE+6}, v{fO}")
        A(f"    v_bfi_b32 v{fO+1}, 1, v{fE+7}, v{fO+1}")
    def poll(r):
        for k in range(3): A(f"    global_load_dwordx2 v[{r+2*k}:{r+2*k+1}], v{fA+k}, s[{sW}:{sW+1}] sc1")
    def own():
        A(f"    v_and_b32 v{fC+6}, -2, v{fO}")
        A(f"    v_and_b32 v{fC+7}, -2, v{fO+1}")
    def ownmul():
        A(f"    v_pk_mul_f32 v[{fC+6}:{fC+7}], v[{fC+6}:{fC+7}], v[{fF}:{fF+1}] op_sel_hi:[1,0]")
    def check(r):
        for k in range(6): A(f"    v_xor_b32 v{fC+k}, v{r+k}, v{fE+k}")
        A(f"    v_or3_b32 v{fT}, v{fC}, v{fC+1}, v{fC+2}")
        A(f"    v_or3_b32 v{fT}, v{fT}, v{fC+3}, v{fC+4}")
        A(f"    v_bitop3_b32 v{fT}, v{fT}, v{fC+5}, 1 bitop3:0xa8   ; (a|b)&1")
        A(f"    v_cmp_ne_u32 vcc, 0, v{fT}")
    A("L_local:")
    factors()
    ST(3)
    A("    s_barrier")
    ST(5)
    gather()
    poll(fPA)
    combine()
    A(f"    global_store_dwordx2 v{fA+3}, v[{fO}:{fO+1}], s[{sW}:{sW+1}]")
    poll(fPB)
    own(); ownmul()
    A("    s_waitcnt vmcnt(4)")
    check(fPA)
    A("    s_cbranch_vccz L_final")
    A("    s_waitcnt vmcnt(0)")
    poll(fPA)
    check(fPB)
    A("    s_cbranch_vccz L_final")
    A("    s_waitcnt vmcnt(0)")
    check(fPA)
    A("    s_cbranch_vccnz L_fin")
    A("L_final:")
    ST(6)
    A(f"    v_pk_mul_f32 v[{fC}:{fC+1}], v[{fC}:{fC+1}], v[{fF}:{fF+1}] op_sel:[0,1] op_sel_hi:[1,1]")
    A(f"    v_pk_mul_f32 v[{fC+2}:{fC+3}], v[{fC+2}:{fC+3}], v[{fF+2}:{fF+3}] op_sel_hi:[1,0]")
    A(f"    v_pk_mul_f32 v[{fC+4}:{fC+5}], v[{fC+4}:{fC+5}], v[{fF+2}:{fF+3}] op_sel:[0,1] op_sel_hi:[1,1]")
    A(f"    v_pk_add_f32 v[{fC}:{fC+1}], v[{fC}:{fC+1}], v[{fC+6}:{fC+7}]")
    A(f"    v_pk_add_f32 v[{fC+2}:{fC+3}], v[{fC+2}:{fC+3}], v[{fC+4}:{fC+5}]")
    A(f"    v_pk_add_f32 v[{fC}:{fC+1}], v[{fC}:{fC+1}], v[{fC+2}:{fC+3}]")
    A(f"    v_cvt_pk_bf16_f32 v{fC}, v{fC}, v{fC+1}")
    A(f"    global_store_dword v{fOA}, v{fC}, s[{sO}:{sO+1}]")
    if stamp: A("    s_waitcnt vmcnt(0)")
    ST(7)
    A("L_fin:")
    if stamp:
        A("    s_waitcnt vmcnt(0) lgkmcnt(0)")
        for i in range(16): A(f"    v_mov_b32 v{vR+i}, s{sST+i}")
        A("    v_lshrrev_b32 v1, 6, v0"); A("    s_mul_i32 s3, s2, 5"); A("    v_add_u32 v1, s3, v1")
        A("    v_lshlrev_b32 v1, 6, v1"); A("    v_add_u32 v1, 0x1000000, v1"); A("    s_mov_b64 exec, 1")
        for i in range(4): A(f"    global_store_dwordx4 v1, v[{vR+4*i}:{vR+4*i+3}], s[{sW}:{sW+1}] offset:{16*i}")
    A("    s_endpgm")
    A("L_global:")
    A(f"    s_lshl_b64 exec, 1, s{sJ}")
    A(f"    global_store_dwordx3 v{fMA}, v[{fMO}:{fMO+2}], s[{sW}:{sW+1}] sc1")
    A("    s_mov_b64 exec, -1")
    A("    s_waitcnt vmcnt(0)")
    ST(3)
    A("    s_barrier")
    ST(5)
    gather()
    combine()
    A(f"    global_store_dwordx2 v{fA+3}, v[{fO}:{fO+1}], s[{sW}:{sW+1}] sc1")
    own()
    A(f"    s_lshl_b32 s3, 1, s{sJ}")
    A(f"    v_mov_b32 v{fT}, s3")
    A("    s_waitcnt vmcnt(0)")
    A("    s_mov_b64 exec, 1")
    A(f"    global_atomic_or v{fU}, v{fDA}, v{fT}, s[{sD}:{sD+1}] sc0")
    A("    s_mov_b64 exec, -1")
    A("    s_waitcnt vmcnt(0)")
    A(f"    v_readfirstlane_b32 s{sFL}, v{fU}")
    poll(fPA)
    A("    s_waitcnt vmcnt(0)")
    for k in range(3):
        A(f"    s_xor_b32 s3, s{sJ}, {k+1}")
        A(f"    s_bitcmp0_b32 s{sFL}, s3")
        A(f"    s_cbranch_scc1 L_g{k}")
        for i in range(2): A(f"    v_and_b32 v{fE+2*k+i}, 1, v{fPA+2*k+i}")
        A(f"L_g{k}:")
    check(fPA)
    A("    s_cbranch_vccnz L_fin")
    A(f"    global_load_dwordx3 v[{fMS}:{fMS+2}], v{fMA}, s[{sW}:{sW+1}] sc1")
    A("    s_waitcnt vmcnt(0)")
    factors()
    ownmul()
    A("    s_branch L_final")
    A('.section .rodata,"a"'); A(".p2align 6")
    A(f".amdhsa_kernel {name}_kernel")
    A(f"  .amdhsa_next_free_vgpr {vg}")
    A(f"  .amdhsa_next_free_sgpr {nsg}")
    A(f"  .amdhsa_accum_offset {min(256,(vg+3)//4*4)}")
    A("  .amdhsa_group_segment_fixed_size 0")
    A("  .amdhsa_kernarg_size 48")
    A("  .amdhsa_user_sgpr_count 2")
    A("  .amdhsa_user_sgpr_kernarg_segment_ptr 1")
    A("  .amdhsa_system_sgpr_workgroup_id_x 1")
    A("  .amdhsa_float_denorm_mode_32 3")
    A(".end_amdhsa_kernel")
    return "\n".join(L) + "\n"

if __name__ == "__main__":
    import sys, ast
    kw = {}
    out = "standalone__mha_softmax__decode.s"
    for a in sys.argv[1:]:
        k, v = a.split("=", 1)
        if k == "o": out = v
        else:
            try: kw[k] = ast.literal_eval(v)
            except Exception: kw[k] = v
    open(out, "w").write(gen(**kw))
```
